```python
import torch

def _softmax(x, axis=-1):
    return torch.softmax(x, dim=axis)
def _gelu(x):
    return torch.nn.functional.gelu(x, approximate="tanh")
def _silu(x):
    return torch.nn.functional.silu(x)
def _sigmoid(x):
    return torch.sigmoid(x)
def _layernorm(x, axis=-1, eps=1e-5):
    m = x.mean(dim=axis, keepdim=True)
    v = x.var(dim=axis, keepdim=True, unbiased=False)
    return (x - m) / torch.sqrt(v + eps)
def _scatter_add(tgt, idx, src, axis=0):
    return tgt.clone().index_add_(axis, idx, src)
def _segment_sum(src, seg, n):
    out = torch.zeros((n,) + src.shape[1:], dtype=src.dtype)
    return out.index_add_(0, seg, src)
def _pad(x, pw):
    flat = tuple(v for pair in reversed(pw) for v in pair)
    return torch.nn.functional.pad(x, flat)

kernel_name = 'standalone__grn__sampling'

def setup_inputs():

    _w = (lambda a: (lambda t: t.to(torch.bfloat16) if t.is_floating_point() else t)(torch.as_tensor(a)))
    B, S, D = 1024, 16, 512
    return {
        "x": _w((lambda *s: torch.randn(*s, dtype=torch.bfloat16) * 0.05)(B, S, D)),
        "g": _w((lambda *s: torch.randn(*s, dtype=torch.bfloat16) * 0.4)(D) * 0.1),
        "b": _w((lambda *s: torch.randn(*s, dtype=torch.bfloat16) * 0.1)(D) * 0.1),
    }

def reference(x, g, b):
    gx = torch.sqrt((x * x).sum(axis=-2, keepdims=True))
    nx = gx / (gx.mean(axis=-1, keepdims=True) + 1e-6)
    return g * (x * nx) + b + x
```

```python
HEADER = """; Kernarg layout for this problem (48 bytes, ptrs only, base s[0:1]):
; @launch grid=({grid},1,1) block=({block},1,1) lds={lds}
.amdgcn_target "amdgcn-amd-amdhsa--gfx950"
.text
.globl standalone__grn__sampling_kernel
.p2align 8
.type standalone__grn__sampling_kernel,@function
standalone__grn__sampling_kernel:
"""

FOOTER = """.section .rodata,"a"
.p2align 6
.amdhsa_kernel standalone__grn__sampling_kernel
  .amdhsa_next_free_vgpr {vgpr}
  .amdhsa_next_free_sgpr {sgpr}
  .amdhsa_accum_offset {accum}
  .amdhsa_group_segment_fixed_size 0
  .amdhsa_kernarg_size 48
  .amdhsa_user_sgpr_count 2
  .amdhsa_user_sgpr_kernarg_segment_ptr 1
  .amdhsa_system_sgpr_workgroup_id_x 1
  .amdhsa_float_denorm_mode_32 3
.end_amdhsa_kernel
"""

class Asm:
    def __init__(self):
        self.lines = []
    def __call__(self, s):
        for l in s.strip("\n").split("\n"):
            self.lines.append("    " + l.strip() if not l.strip().endswith(":") else l.strip())
    def text(self):
        return "\n".join(self.lines) + "\n"

def wrap(body, grid, block, lds, vgpr, sgpr=32):
    accum = (vgpr + 3) // 4 * 4
    return HEADER.format(grid=grid, block=block, lds=lds) + body + FOOTER.format(vgpr=vgpr, sgpr=sgpr, accum=accum)
```

```python
import sys
from common import *

def gen(wpb=1, ldf="", stf=""):
    a = Asm()
    nwg = 1024 // wpb
    P = 8
    L = 72
    ACC = 136
    G = 144
    B = 148
    SH = 152
    BH = 160
    T = 168
    a("s_load_dwordx4 s[4:7], s[0:1], 0")
    a("s_load_dwordx4 s[8:11], s[0:1], 16")
    a(f"s_cmp_ge_u32 s2, {nwg}")
    a("s_cbranch_scc1 L_done")
    if wpb == 1:
        a("v_lshlrev_b32 v1, 4, v0")
        a("s_lshl_b32 s3, s2, 14")
        a("s_add_u32 s3, s3, 4096")
        a("v_add_u32 v2, s3, v1")
    else:
        a("v_and_b32 v1, 63, v0")
        a("v_lshrrev_b32 v4, 6, v0")
        a("v_lshlrev_b32 v1, 4, v1")
        a(f"s_mul_i32 s3, s2, {16384*wpb}")
        a("s_add_u32 s3, s3, 4096")
        a("v_lshl_add_u32 v2, v4, 14, v1")
        a("v_add_u32 v2, s3, v2")
    a("v_add_u32 v3, 0x2000, v2")
    a("s_mov_b32 s12, 0xffff0000")
    a("s_waitcnt lgkmcnt(0)")
    for r in range(16):
        va = "v2" if r < 8 else "v3"
        off = -4096 + (r % 8) * 1024
        a(f"global_load_dwordx4 v[{P+4*r}:{P+4*r+3}], {va}, s[4:5] offset:{off} {ldf}")
    a(f"global_load_dwordx4 v[{G}:{G+3}], v1, s[6:7]")
    a(f"global_load_dwordx4 v[{B}:{B+3}], v1, s[8:9]")
    for r in range(16):
        a(f"s_waitcnt vmcnt({17-r})")
        p = P + 4*r; l = L + 4*r
        for j in range(4):
            a(f"v_lshlrev_b32 v{l+j}, 16, v{p+j}")
            a(f"v_and_b32 v{p+j}, s12, v{p+j}")
        for j in (0, 2):
            if r == 0:
                a(f"v_pk_mul_f32 v[{ACC+j}:{ACC+j+1}], v[{p+j}:{p+j+1}], v[{p+j}:{p+j+1}]")
                a(f"v_pk_mul_f32 v[{ACC+4+j}:{ACC+4+j+1}], v[{l+j}:{l+j+1}], v[{l+j}:{l+j+1}]")
            else:
                a(f"v_pk_fma_f32 v[{ACC+j}:{ACC+j+1}], v[{p+j}:{p+j+1}], v[{p+j}:{p+j+1}], v[{ACC+j}:{ACC+j+1}]")
                a(f"v_pk_fma_f32 v[{ACC+4+j}:{ACC+4+j+1}], v[{l+j}:{l+j+1}], v[{l+j}:{l+j+1}], v[{ACC+4+j}:{ACC+4+j+1}]")
    for j in range(8):
        a(f"v_sqrt_f32 v{ACC+j}, v{ACC+j}")
    a("s_nop 0")
    a(f"v_pk_add_f32 v[{T}:{T+1}], v[{ACC}:{ACC+1}], v[{ACC+2}:{ACC+3}]")
    a(f"v_pk_add_f32 v[{T+2}:{T+3}], v[{ACC+4}:{ACC+5}], v[{ACC+6}:{ACC+7}]")
    a(f"v_pk_add_f32 v[{T}:{T+1}], v[{T}:{T+1}], v[{T+2}:{T+3}]")
    a(f"v_add_f32 v{T}, v{T}, v{T+1}")
    a("s_waitcnt vmcnt(0)")
    fill = []
    for j in range(4):
        fill.append(f"v_lshlrev_b32 v{SH+4+j}, 16, v{G+j}")
        fill.append(f"v_and_b32 v{SH+j}, s12, v{G+j}")
    for j in range(4):
        fill.append(f"v_lshlrev_b32 v{BH+4+j}, 16, v{B+j}")
        fill.append(f"v_and_b32 v{BH+j}, s12, v{B+j}")
    steps = ["quad_perm:[1,0,3,2] row_mask:0xf bank_mask:0xf",
             "quad_perm:[2,3,0,1] row_mask:0xf bank_mask:0xf",
             "row_half_mirror row_mask:0xf bank_mask:0xf",
             "row_mirror row_mask:0xf bank_mask:0xf",
             "row_bcast:15 row_mask:0xa bank_mask:0xf",
             "row_bcast:31 row_mask:0xc bank_mask:0xf"]
    for s in steps:
        a(fill.pop(0)); a(fill.pop(0))
        a(f"v_add_f32_dpp v{T}, v{T}, v{T} {s}")
    a(fill.pop(0)); a(fill.pop(0))
    a(f"v_readlane_b32 s13, v{T}, 63")
    a(fill.pop(0)); a(fill.pop(0))
    assert not fill
    for j in (0, 2, 4, 6):
        a(f"v_pk_mul_f32 v[{SH+j}:{SH+j+1}], v[{SH+j}:{SH+j+1}], v[{ACC+j}:{ACC+j+1}]")
    a(f"v_mov_b32 v{T+1}, 0x3b000000")
    a(f"v_mov_b32 v{T+2}, 0x358637bd")
    a(f"v_fmac_f32 v{T+2}, s13, v{T+1}")
    a(f"v_rcp_f32 v{T+2}, v{T+2}")
    a("s_nop 0")
    for j in range(8):
        a(f"v_fma_f32 v{SH+j}, v{SH+j}, v{T+2}, 1.0")
    for r in range(16):
        p = P + 4*r; l = L + 4*r
        for j in (0, 2):
            a(f"v_pk_fma_f32 v[{p+j}:{p+j+1}], v[{p+j}:{p+j+1}], v[{SH+j}:{SH+j+1}], v[{BH+j}:{BH+j+1}]")
            a(f"v_pk_fma_f32 v[{l+j}:{l+j+1}], v[{l+j}:{l+j+1}], v[{SH+4+j}:{SH+4+j+1}], v[{BH+4+j}:{BH+4+j+1}]")
        for j in range(4):
            a(f"v_cvt_pk_bf16_f32 v{p+j}, v{l+j}, v{p+j}")
        va = "v2" if r < 8 else "v3"
        off = -4096 + (r % 8) * 1024
        a(f"global_store_dwordx4 {va}, v[{p}:{p+3}], s[10:11] offset:{off} {stf}")
    a("L_done:")
    a("s_endpgm")
    return wrap(a.text(), nwg, 64*wpb, 0, T+8, 16)

if __name__ == "__main__":
    out = "var/"
    for name, kw in {
        "a_w1": dict(wpb=1),
        "a_w4": dict(wpb=4),
        "a_w1_nt": dict(wpb=1, ldf="nt", stf="nt"),
        "a_w4_nt": dict(wpb=4, ldf="nt", stf="nt"),
        "a_w1_sc1": dict(wpb=1, ldf="", stf="sc0 sc1"),
        "a_w1_ntld": dict(wpb=1, ldf="nt", stf=""),
    }.items():
        open(out + name + ".s", "w").write(gen(**kw))
```

```python
HEADER = """; Kernarg layout for this problem (48 bytes, ptrs only, base s[0:1]):
; @launch grid=({grid},1,1) block=({block},1,1) lds={lds}
.amdgcn_target "amdgcn-amd-amdhsa--gfx950"
.text
.p2align 12
.globl standalone__grn__sampling_kernel
.p2align 8
.type standalone__grn__sampling_kernel,@function
standalone__grn__sampling_kernel:
"""

FOOTER = """.section .rodata,"a"
.p2align 6
.amdhsa_kernel standalone__grn__sampling_kernel
  .amdhsa_next_free_vgpr {vgpr}
  .amdhsa_next_free_sgpr {sgpr}
  .amdhsa_accum_offset {accum}
  .amdhsa_group_segment_fixed_size 0
  .amdhsa_kernarg_size 48
  .amdhsa_user_sgpr_count 2
  .amdhsa_user_sgpr_kernarg_segment_ptr 1
  .amdhsa_system_sgpr_workgroup_id_x 1
  .amdhsa_float_denorm_mode_32 3
.end_amdhsa_kernel
"""

class Asm:
    def __init__(self):
        self.lines = []
    def __call__(self, s):
        for l in s.strip("\n").split("\n"):
            self.lines.append("    " + l.strip() if not l.strip().endswith(":") else l.strip())
    def text(self):
        return "\n".join(self.lines) + "\n"

def wrap(body, grid, block, lds, vgpr, sgpr=32):
    if "L_amp_pub" in body: grid += 1
    accum = (vgpr + 3) // 4 * 4
    return HEADER.format(grid=grid, block=block, lds=lds) + body + FOOTER.format(vgpr=vgpr, sgpr=sgpr, accum=accum)

def diag_tail(a, n):
    a(f"s_memrealtime s[{20+2*(n-2)}:{21+2*(n-2)}]")
    a("s_waitcnt vmcnt(0)")
    a(f"s_memrealtime s[{20+2*(n-1)}:{21+2*(n-1)}]")
    a("s_waitcnt lgkmcnt(0)")
    a("v_mbcnt_lo_u32_b32 v5, -1, 0")
    a("v_mbcnt_hi_u32_b32 v5, -1, v5")
    a("v_lshlrev_b32 v5, 2, v5")
    a("v_mov_b32 v4, 0")
    for i in range(n):
        a(f"s_not_b32 s17, s{20+2*i}")
        a(f"v_writelane_b32 v4, s17, {2*i}")
        a(f"v_writelane_b32 v4, s{20+2*i}, {2*i+1}")
    a(f"s_mov_b64 exec, {hex((1 << (2*n)) - 1)}")
    a("global_atomic_umax v5, v4, s[18:19]")

def amp_head(a):
    a("s_memrealtime s[20:21]")
    a("s_cmp_eq_u32 s2, 0")
    a("s_cbranch_scc1 L_amp_pub")
    a("s_sub_u32 s2, s2, 1")
def amp_kernarg(a):
    pass
def amp_publish(a, vt):
    pass
def amp_outofline(a, vt):
    a("L_amp_pub:")
    a("s_load_dwordx2 s[18:19], s[0:1], 32")
    a("s_waitcnt lgkmcnt(0)")
    a("s_or_b32 s22, s20, 1")
    a(f"v_mov_b32 v{vt}, 0")
    a(f"v_mov_b32 v{vt+1}, s22")
    a(f"global_store_dword v{vt}, v{vt+1}, s[18:19] sc0 sc1")
    a("s_endpgm")
def amp_tail(a, vt, k=11, atomic=False):
    a("s_waitcnt vmcnt(0)")
    a("s_memrealtime s[22:23]")
    a("s_load_dwordx2 s[18:19], s[0:1], 32")
    a(f"v_mov_b32 v{vt}, 0")
    a("s_waitcnt lgkmcnt(0)")
    a(f"global_load_dword v{vt+1}, v{vt}, s[18:19] sc0 sc1")
    a("s_waitcnt vmcnt(0) lgkmcnt(0)")
    a(f"v_readfirstlane_b32 s24, v{vt+1}")
    a("s_nop 3")
    a("s_cmp_eq_u32 s24, 0")
    a("s_cselect_b32 s24, s20, s24")
    a("s_sub_u32 s25, s22, s24")
    a("s_min_u32 s25, s25, 3000")
    a(f"s_mul_i32 s26, s25, {k}")
    a("L_amp_spin:")
    a("s_sleep 4")
    a("s_memrealtime s[22:23]")
    a("s_waitcnt lgkmcnt(0)")
    a("s_sub_u32 s22, s22, s24")
    a("s_cmp_lt_u32 s22, s26")
    a("s_cbranch_scc1 L_amp_spin")
    if atomic:
        a(f"v_mov_b32 v{vt+1}, s25")
        a("s_mov_b64 exec, 1")
        a(f"global_atomic_umax v{vt}, v{vt+1}, s[18:19] offset:4")

def tr_kernarg(a):
    a("s_load_dwordx2 s[36:37], s[0:1], 40")
def tr(a, i):
    a(f"s_memrealtime s[{40+2*i}:{41+2*i}]")
def tr_tail(a, n, vt, wpb, widreg):
    a("s_waitcnt vmcnt(0)")
    tr(a, n-1)
    a("s_getreg_b32 s38, hwreg(HW_REG_XCC_ID)")
    a("s_getreg_b32 s39, hwreg(HW_REG_HW_ID)")
    a("s_waitcnt lgkmcnt(0)")
    a(f"v_mov_b32 v{vt}, 0")
    for i in range(n):
        a(f"v_writelane_b32 v{vt}, s{40+2*i}, {i}")
    a(f"v_writelane_b32 v{vt}, s38, 30")
    a(f"v_writelane_b32 v{vt}, s39, 31")
    a(f"v_mbcnt_lo_u32_b32 v{vt+1}, -1, 0")
    a(f"v_mbcnt_hi_u32_b32 v{vt+1}, -1, v{vt+1}")
    a(f"v_lshlrev_b32 v{vt+1}, 2, v{vt+1}")
    a(f"s_mul_i32 s38, s2, {128*wpb}")
    a(f"v_add_u32 v{vt+1}, s38, v{vt+1}")
    if widreg is not None:
        a(f"v_lshl_add_u32 v{vt+1}, v{widreg}, 7, v{vt+1}")
    a("s_mov_b32 exec_hi, 0")
    a(f"global_store_dword v{vt+1}, v{vt}, s[36:37]")

import subprocess, re, os
def line_offsets(lines):
    src = ['.amdgcn_target "amdgcn-amd-amdhsa--gfx950"', ".text", "K0:"]
    for i, l in enumerate(lines):
        src.append(f"Q{i}:")
        src.append(l)
    src.append(f"Q{len(lines)}:")
    open("off.s", "w").write("\n".join(src) + "\n")
    r = subprocess.run(["clang", "-x", "assembler", "-target", "amdgcn-amd-amdhsa", "-mcpu=gfx950", "-c", "off.s", "-o", "off.o"], capture_output=True, text=True)
    assert r.returncode == 0, r.stderr
    out = subprocess.run(["llvm-readelf", "-s", "off.o"], capture_output=True, text=True).stdout
    off = {}
    for l in out.splitlines():
        p = l.split()
        if len(p) == 8 and re.fullmatch(r"Q\d+", p[7]): off[int(p[7][1:])] = int(p[1], 16)
    return [off[i] for i in range(len(lines) + 1)]

def insert_hops(a, nh, end_label="L_done:", entry_in_page=0x300, back="Hback"):
    start = 0
    placed = 0
    for k in range(1, nh + 1):
        stub = [f"H{j}:" for j in range(k, nh + 1)]
        offs = line_offsets(a.lines + stub)
        nxt = start + 1088
        page = 4096 - entry_in_page
        if start < page < nxt: nxt = page
        end = offs[a.lines.index(end_label)] + 4
        if nxt >= end: break
        i = next(i for i in range(len(a.lines)) if offs[i] >= nxt)
        while a.lines[i-1].strip().startswith("s_cmp"): i += 1
        a.lines[i:i] = [f"H{k}:", f"    s_cbranch_scc1 {back}"]
        start = nxt
        placed = k
    i = a.lines.index(back + ":")
    a.lines[i:i] = [f"H{j}:" for j in range(placed + 1, nh + 1)]
    return placed
```

```python
import sys
from common import *

def gen(ldf="nt", stf="nt", gbpos=5, outpf=False, hop=True, amp=False, trace=False, order=None, storder=None, prio=None):
    a = Asm()
    nwg = 1024
    P = 8
    L = 72
    ACC = 136
    SH = 144
    BH = 152
    T = 160
    G = T
    B = T + 4
    order = order or list(range(16))
    storder = storder or list(range(16))
    if trace: tr(a, 0); tr_kernarg(a)
    if amp: amp_head(a)
    a("s_load_dwordx8 s[4:11], s[0:1], 0")
    a(f"s_cmp_ge_u32 s2, {nwg}")
    a("s_cbranch_scc1 L_done")
    a("v_lshlrev_b32 v1, 4, v0")
    a("s_lshl_b32 s3, s2, 14")
    a("s_add_u32 s13, s3, 4096")
    a("v_add_u32 v2, s13, v1")
    a("v_add_u32 v3, 0x2000, v2")
    if outpf: a("v_mov_b32 v6, s3")
    a("s_mov_b32 s12, 0xffff0000")
    a("v_mov_b32 v4, 0x3b000000")
    a("v_mov_b32 v5, 0x358637bd")
    if prio is not None: a(f"s_setprio {prio}")
    if hop:
        a("s_lshr_b32 s13, s2, 8")
        for k in range(1, 3):
            a(f"s_cmp_eq_u32 s13, {k-1}")
            a(f"s_cbranch_scc1 H{k}")
        a("Hback:")
        a("s_cmp_lg_u32 s2, s2")
    a("s_waitcnt lgkmcnt(0)")
    if trace: tr(a, 1)
    q = []
    def wait_for(tag):
        if tag not in q: return
        a(f"s_waitcnt vmcnt({len(q) - 1 - q.index(tag)})")
        del q[:q.index(tag) + 1]
    def gb():
        a(f"global_load_dwordx4 v[{G}:{G+3}], v1, s[6:7]"); q.append("g")
        a(f"global_load_dwordx4 v[{B}:{B+3}], v1, s[8:9]"); q.append("b")
        if outpf: a("global_load_dword v7, v6, s[10:11] nt"); q.append("o")
    for n, r in enumerate(order):
        if n == gbpos: gb()
        va = "v2" if r < 8 else "v3"
        off = -4096 + (r % 8) * 1024
        a(f"global_load_dwordx4 v[{P+4*r}:{P+4*r+3}], {va}, s[4:5] offset:{off} {ldf}")
        q.append(r)
    if gbpos >= 16: gb()
    def unpack_gb():
        wait_for("b")
        for j in range(4):
            a(f"v_lshlrev_b32 v{SH+4+j}, 16, v{G+j}")
            a(f"v_and_b32 v{SH+j}, s12, v{G+j}")
        for j in range(4):
            a(f"v_lshlrev_b32 v{BH+4+j}, 16, v{B+j}")
            a(f"v_and_b32 v{BH+j}, s12, v{B+j}")
    for n, r in enumerate(order):
        if n == gbpos: unpack_gb()
        wait_for(r)
        if trace and n == 0: tr(a, 2)
        if trace and n == 15: tr(a, 3)
        p = P + 4*r; l = L + 4*r
        def sq(reg, acc):
            if n == 0: a(f"v_pk_mul_f32 v[{acc}:{acc+1}], v[{reg}:{reg+1}], v[{reg}:{reg+1}]")
            else: a(f"v_pk_fma_f32 v[{acc}:{acc+1}], v[{reg}:{reg+1}], v[{reg}:{reg+1}], v[{acc}:{acc+1}]")
        for j in range(4):
            a(f"v_lshlrev_b32 v{l+j}, 16, v{p+j}")
            a(f"v_and_b32 v{p+j}, s12, v{p+j}")
        sq(p, ACC); sq(l, ACC+4); sq(p+2, ACC+2); sq(l+2, ACC+6)
    if gbpos >= 16: unpack_gb()
    for j in (0, 1, 4, 5, 2, 3, 6, 7):
        a(f"v_sqrt_f32 v{ACC+j}, v{ACC+j}")
    a(f"v_pk_add_f32 v[{T}:{T+1}], v[{ACC}:{ACC+1}], v[{ACC+4}:{ACC+5}]")
    a(f"v_pk_add_f32 v[{T+2}:{T+3}], v[{ACC+2}:{ACC+3}], v[{ACC+6}:{ACC+7}]")
    a(f"v_pk_add_f32 v[{T}:{T+1}], v[{T}:{T+1}], v[{T+2}:{T+3}]")
    a(f"v_add_f32 v{T}, v{T}, v{T+1}")
    fill = [[f"v_pk_mul_f32 v[{SH+j}:{SH+j+1}], v[{SH+j}:{SH+j+1}], v[{ACC+j}:{ACC+j+1}]" for j in (0, 2)],
            [f"v_pk_mul_f32 v[{SH+j}:{SH+j+1}], v[{SH+j}:{SH+j+1}], v[{ACC+j}:{ACC+j+1}]" for j in (4, 6)],
            ["s_nop 1"], ["s_nop 1"], ["s_nop 1"], ["s_nop 1"]]
    steps = ["quad_perm:[1,0,3,2] row_mask:0xf bank_mask:0xf",
             "quad_perm:[2,3,0,1] row_mask:0xf bank_mask:0xf",
             "row_half_mirror row_mask:0xf bank_mask:0xf",
             "row_mirror row_mask:0xf bank_mask:0xf",
             "row_bcast:15 row_mask:0xa bank_mask:0xf",
             "row_bcast:31 row_mask:0xc bank_mask:0xf"]
    for f, s in zip(fill, steps):
        for x in f: a(x)
        a(f"v_add_f32_dpp v{T}, v{T}, v{T} {s}")
    a(f"v_fma_f32 v{T}, v{T}, v4, v5")
    a(f"v_rcp_f32 v{T}, v{T}")
    a("s_nop 0")
    a(f"v_readlane_b32 s14, v{T}, 63")
    a("s_nop 1")
    for j in (0, 4, 2, 6):
        a(f"v_pk_fma_f32 v[{SH+j}:{SH+j+1}], v[{SH+j}:{SH+j+1}], s[14:15], 1.0 op_sel_hi:[1,0,0]")
    if trace: tr(a, 4)
    for r in storder:
        p = P + 4*r; l = L + 4*r
        for j in (0, 2):
            a(f"v_pk_fma_f32 v[{p+j}:{p+j+1}], v[{p+j}:{p+j+1}], v[{SH+j}:{SH+j+1}], v[{BH+j}:{BH+j+1}]")
            a(f"v_pk_fma_f32 v[{l+j}:{l+j+1}], v[{l+j}:{l+j+1}], v[{SH+4+j}:{SH+4+j+1}], v[{BH+4+j}:{BH+4+j+1}]")
        for j in range(4):
            a(f"v_cvt_pk_bf16_f32 v{p+j}, v{l+j}, v{p+j}")
        va = "v2" if r < 8 else "v3"
        off = -4096 + (r % 8) * 1024
        a(f"global_store_dwordx4 {va}, v[{p}:{p+3}], s[10:11] offset:{off} {stf}")
    if trace: tr(a, 5); tr_tail(a, 7, T, 1, None)
    if amp: amp_tail(a, T)
    a("L_done:")
    a("s_endpgm")
    if amp: amp_outofline(a, T)
    if hop: insert_hops(a, 2)
    return wrap(a.text(), nwg, 64, 0, T+8, 96 if trace else 32)

V = {
    "d_nt": dict(),
    "d_nt_nohop": dict(hop=False),
    "d_nt_op": dict(outpf=True),
    "d_nt_gb16": dict(gbpos=16),
    "d_nt_gb0": dict(gbpos=0),
    "d_sc": dict(stf="sc0 sc1 nt"),
    "d_sc_nohop": dict(stf="sc0 sc1 nt", hop=False),
    "d_sc_op": dict(stf="sc0 sc1 nt", outpf=True),
    "d_sc1nt": dict(stf="sc1 nt"),
    "d_pl_nt": dict(ldf=""),
    "d_ldsc_nt": dict(ldf="sc0 sc1 nt"),
}
if __name__ == "__main__":
    out = "var/"
    for name, kw in V.items():
        open(out + name + ".s", "w").write(gen(**kw))
        open(out + name + "_tr.s", "w").write(gen(trace=True, **kw))
        open(out + name + "_amp.s", "w").write(gen(amp=True, **kw))
    print(" ".join(V))
```

```python
import sys
from common import *

def gen(ldf="nt", stf="nt", gbpos=5, outpf=False, hop=True, amp=False, trace=False, order=None, storder=None, prio=None, rot=None, rotmask=15, jit=None):
    a = Asm()
    nwg = 1024
    P = 8
    L = 72
    ACC = 136
    SH = 144
    BH = 152
    T = 160
    G = T
    B = T + 4
    if jit is not None: G, B, gbpos = 184, 188, 99
    order = order or list(range(16))
    storder = storder or list(range(16))
    if trace: tr(a, 0); tr_kernarg(a)
    if amp: amp_head(a)
    a("s_load_dwordx8 s[4:11], s[0:1], 0")
    a(f"s_cmp_ge_u32 s2, {nwg}")
    a("s_cbranch_scc1 L_done")
    a("v_lshlrev_b32 v1, 4, v0")
    a("s_lshl_b32 s3, s2, 14")
    a("s_add_u32 s13, s3, 4096")
    a("v_add_u32 v2, s13, v1")
    a("v_add_u32 v3, 0x2000, v2")
    VA = 168
    if rot is not None:
        a(f"s_lshr_b32 s14, s2, {rot}")
        a(f"s_and_b32 s14, s14, {rotmask}")
        a("s_lshl_b32 s14, s14, 10")
        a("s_or_b32 s14, s14, s3")
        a(f"v_or_b32 v{VA}, s14, v1")
        for j in range(1, 16):
            a(f"v_xor_b32 v{VA+j}, {j << 10}, v{VA}")
    if outpf: a("v_mov_b32 v6, s3")
    a("s_mov_b32 s12, 0xffff0000")
    a("v_mov_b32 v4, 0x3b000000")
    a("v_mov_b32 v5, 0x358637bd")
    if prio is not None: a(f"s_setprio {prio}")
    if hop:
        a("s_lshr_b32 s13, s2, 8")
        for k in range(1, 3):
            a(f"s_cmp_eq_u32 s13, {k-1}")
            a(f"s_cbranch_scc1 H{k}")
        a("Hback:")
        a("s_cmp_lg_u32 s2, s2")
    a("s_waitcnt lgkmcnt(0)")
    if trace: tr(a, 1)
    q = []
    def wait_for(tag):
        if tag not in q: return
        a(f"s_waitcnt vmcnt({len(q) - 1 - q.index(tag)})")
        del q[:q.index(tag) + 1]
    def gb():
        a(f"global_load_dwordx4 v[{G}:{G+3}], v1, s[6:7]"); q.append("g")
        a(f"global_load_dwordx4 v[{B}:{B+3}], v1, s[8:9]"); q.append("b")
        if outpf: a("global_load_dword v7, v6, s[10:11] nt"); q.append("o")
    for n, r in enumerate(order):
        if n == gbpos: gb()
        va = "v2" if r < 8 else "v3"
        off = -4096 + (r % 8) * 1024
        if rot is not None: va, off = f"v{VA+r}", 0
        a(f"global_load_dwordx4 v[{P+4*r}:{P+4*r+3}], {va}, s[4:5] offset:{off} {ldf}")
        q.append(r)
    if gbpos >= 16 and jit is None: gb()
    def unpack_gb():
        wait_for("b")
        for j in range(4):
            a(f"v_lshlrev_b32 v{SH+4+j}, 16, v{G+j}")
            a(f"v_and_b32 v{SH+j}, s12, v{G+j}")
        for j in range(4):
            a(f"v_lshlrev_b32 v{BH+4+j}, 16, v{B+j}")
            a(f"v_and_b32 v{BH+j}, s12, v{B+j}")
    for n, r in enumerate(order):
        if n == gbpos: unpack_gb()
        wait_for(r)
        if jit == n: gb()
        if trace and n == 0: tr(a, 2)
        if trace and n == 15: tr(a, 3)
        p = P + 4*r; l = L + 4*r
        def sq(reg, acc):
            if n == 0: a(f"v_pk_mul_f32 v[{acc}:{acc+1}], v[{reg}:{reg+1}], v[{reg}:{reg+1}]")
            else: a(f"v_pk_fma_f32 v[{acc}:{acc+1}], v[{reg}:{reg+1}], v[{reg}:{reg+1}], v[{acc}:{acc+1}]")
        for j in range(4):
            a(f"v_lshlrev_b32 v{l+j}, 16, v{p+j}")
            a(f"v_and_b32 v{p+j}, s12, v{p+j}")
        sq(p, ACC); sq(l, ACC+4); sq(p+2, ACC+2); sq(l+2, ACC+6)
    if gbpos >= 16 and jit is None: unpack_gb()
    for j in (0, 1, 4, 5, 2, 3, 6, 7):
        a(f"v_sqrt_f32 v{ACC+j}, v{ACC+j}")
    a(f"v_pk_add_f32 v[{T}:{T+1}], v[{ACC}:{ACC+1}], v[{ACC+4}:{ACC+5}]")
    a(f"v_pk_add_f32 v[{T+2}:{T+3}], v[{ACC+2}:{ACC+3}], v[{ACC+6}:{ACC+7}]")
    a(f"v_pk_add_f32 v[{T}:{T+1}], v[{T}:{T+1}], v[{T+2}:{T+3}]")
    a(f"v_add_f32 v{T}, v{T}, v{T+1}")
    if jit is not None:
        T0 = T
        unpack_gb()
    fill = [[f"v_pk_mul_f32 v[{SH+j}:{SH+j+1}], v[{SH+j}:{SH+j+1}], v[{ACC+j}:{ACC+j+1}]" for j in (0, 2)],
            [f"v_pk_mul_f32 v[{SH+j}:{SH+j+1}], v[{SH+j}:{SH+j+1}], v[{ACC+j}:{ACC+j+1}]" for j in (4, 6)],
            ["s_nop 1"], ["s_nop 1"], ["s_nop 1"], ["s_nop 1"]]
    steps = ["quad_perm:[1,0,3,2] row_mask:0xf bank_mask:0xf",
             "quad_perm:[2,3,0,1] row_mask:0xf bank_mask:0xf",
             "row_half_mirror row_mask:0xf bank_mask:0xf",
             "row_mirror row_mask:0xf bank_mask:0xf",
             "row_bcast:15 row_mask:0xa bank_mask:0xf",
             "row_bcast:31 row_mask:0xc bank_mask:0xf"]
    for f, s in zip(fill, steps):
        for x in f: a(x)
        a(f"v_add_f32_dpp v{T}, v{T}, v{T} {s}")
    a(f"v_fma_f32 v{T}, v{T}, v4, v5")
    a(f"v_rcp_f32 v{T}, v{T}")
    a("s_nop 0")
    a(f"v_readlane_b32 s14, v{T}, 63")
    a("s_nop 1")
    for j in (0, 4, 2, 6):
        a(f"v_pk_fma_f32 v[{SH+j}:{SH+j+1}], v[{SH+j}:{SH+j+1}], s[14:15], 1.0 op_sel_hi:[1,0,0]")
    if trace: tr(a, 4)
    for r in storder:
        p = P + 4*r; l = L + 4*r
        for j in (0, 2):
            a(f"v_pk_fma_f32 v[{p+j}:{p+j+1}], v[{p+j}:{p+j+1}], v[{SH+j}:{SH+j+1}], v[{BH+j}:{BH+j+1}]")
            a(f"v_pk_fma_f32 v[{l+j}:{l+j+1}], v[{l+j}:{l+j+1}], v[{SH+4+j}:{SH+4+j+1}], v[{BH+4+j}:{BH+4+j+1}]")
        for j in range(4):
            a(f"v_cvt_pk_bf16_f32 v{p+j}, v{l+j}, v{p+j}")
        va = "v2" if r < 8 else "v3"
        off = -4096 + (r % 8) * 1024
        if rot is not None: va, off = f"v{VA+r}", 0
        a(f"global_store_dwordx4 {va}, v[{p}:{p+3}], s[10:11] offset:{off} {stf}")
    if trace: tr(a, 5); tr_tail(a, 7, T, 1, None)
    if amp: amp_tail(a, T)
    a("L_done:")
    a("s_endpgm")
    if amp: amp_outofline(a, T)
    if hop: insert_hops(a, 2)
    return wrap(a.text(), nwg, 64, 0, 192 if jit is not None else T+8 if rot is None else VA+16, 96 if trace else 32)

IL = [x for i in range(8) for x in (i, i+8)]
IL4 = [x for i in range(4) for x in (i, i+8, i+4, i+12)]
IL2 = [x for i in range(0, 8, 2) for x in (i, i+1, i+8, i+9)]
V = {
    "d_nt": dict(),
    "d_nt_rot1": dict(rot=1),
    "d_nt_rot3": dict(rot=3),
    "d_nt_rot0": dict(rot=0),
    "d_nt_rot6": dict(rot=6),
    "d_nt_rot3m12": dict(rot=1, rotmask=12),
    "d_nt_rot3m4": dict(rot=1, rotmask=4),
    "d_sc_rot1": dict(rot=1, stf="sc0 sc1 nt"),
    "d_sc_rot3": dict(rot=3, stf="sc0 sc1 nt"),
    "d_pl": dict(stf=""),
    **{f"d_nt_j{j}": dict(jit=j) for j in (4, 8, 11, 13, 15)},
    **{f"d_sc_j{j}": dict(jit=j, stf="sc0 sc1 nt") for j in (8, 13)},
    **{f"d_nt_gb{j}": dict(gbpos=j) for j in (2, 3, 4, 6, 8, 11)},
    "d_nt_il": dict(order=IL),
    "d_nt_ilil": dict(order=IL, storder=IL),
    "d_nt_sil": dict(storder=IL),
    "d_nt_il4": dict(order=IL4, storder=IL4),
    "d_nt_srev": dict(storder=list(range(15, -1, -1))),
    "d_nt_il2": dict(order=IL2, storder=IL2),
    "d_nt_nohop": dict(hop=False),
    "d_nt_op": dict(outpf=True),
    "d_nt_gb16": dict(gbpos=16),
    "d_nt_gb0": dict(gbpos=0),
    "d_sc": dict(stf="sc0 sc1 nt"),
    "d_sc_nohop": dict(stf="sc0 sc1 nt", hop=False),
    "d_sc_op": dict(stf="sc0 sc1 nt", outpf=True),
    "d_sc1nt": dict(stf="sc1 nt"),
    "d_pl_nt": dict(ldf=""),
    "d_ldsc_nt": dict(ldf="sc0 sc1 nt"),
}
if __name__ == "__main__":
    out = "var/"
    for name, kw in V.items():
        open(out + name + ".s", "w").write(gen(**kw))
        open(out + name + "_tr.s", "w").write(gen(trace=True, **kw))
        open(out + name + "_amp.s", "w").write(gen(amp=True, **kw))
    print(" ".join(V))
```

```python
import sys
from common import *

def gen(ldf="nt", stf="nt", gbpos=5, outpf=False, hop=True, amp=False, trace=False, order=None, storder=None, prio=None, rot=None, rotmask=15, jit=None, hopgen=(0, 1), chain=False, l2pf=False, hold=0, bmap=None):
    a = Asm()
    if bmap and bmap[0] == "lin":
        for j in range(10): a(f".set XM{j}, {hex(bmap[1][j])}")
    nwg = 1024
    P = 8
    L = 72
    ACC = 136
    SH = 144
    BH = 152
    T = 160
    G = T
    B = T + 4
    if jit is not None: G, B, gbpos = 184, 188, 99
    order = order or list(range(16))
    storder = storder or list(range(16))
    if trace: tr(a, 0); tr_kernarg(a)
    if hold: a("s_memrealtime s[24:25]")
    if amp: amp_head(a)
    a("s_load_dwordx8 s[4:11], s[0:1], 0")
    a(f"s_cmp_ge_u32 s2, {nwg}")
    a("s_cbranch_scc1 L_done")
    a("v_lshlrev_b32 v1, 4, v0")
    if bmap is None:
        a("s_lshl_b32 s3, s2, 14")
    elif bmap[0] == "x":
        a(f"s_lshr_b32 s3, s2, {bmap[1]}")
        a(f"s_and_b32 s3, s3, {bmap[2]}")
        if len(bmap) > 3: a(f"s_lshl_b32 s3, s3, {bmap[3]}")
        a("s_xor_b32 s3, s3, s2")
        a("s_lshl_b32 s3, s3, 14")
    elif bmap[0] == "m":
        a("s_mov_b32 s3, s2")
        for sh, m, l in bmap[1]:
            a(f"s_lshr_b32 s13, s2, {sh}")
            a(f"s_and_b32 s13, s13, {m}")
            if l: a(f"s_lshl_b32 s13, s13, {l}")
            a("s_xor_b32 s3, s3, s13")
        a("s_lshl_b32 s3, s3, 14")
    elif bmap[0] == "lin":
        a("s_mov_b32 s3, 0")
        for j in range(10):
            a(f"s_bitcmp1_b32 s2, {j}")
            a(f"s_cselect_b32 s13, XM{j}, 0")
            a("s_xor_b32 s3, s3, s13")
    elif bmap[0] == "g":
        a("s_and_b32 s3, s2, 255")
        a("s_lshr_b32 s13, s2, 8")
        a("s_lshl2_add_u32 s3, s3, s13")
        a("s_lshl_b32 s3, s3, 14")
    elif bmap[0] == "p":
        a("s_and_b32 s3, s2, 7")
        a("s_lshl_b32 s3, s3, 1")
        a("s_bfe_u32 s13, s2, 0x10003")
        a("s_or_b32 s3, s3, s13")
        a("s_andn2_b32 s13, s2, 15")
        a("s_or_b32 s3, s3, s13")
        a("s_lshl_b32 s3, s3, 14")
    a("s_add_u32 s13, s3, 4096")
    a("v_add_u32 v2, s13, v1")
    a("v_add_u32 v3, 0x2000, v2")
    VA = 168
    if rot == "lin":
        a(f"v_or_b32 v{VA}, s3, v1")
    elif rot is not None:
        a(f"s_lshr_b32 s14, s2, {rot}")
        a(f"s_and_b32 s14, s14, {rotmask}")
        a("s_lshl_b32 s14, s14, 10")
        a("s_or_b32 s14, s14, s3")
        a(f"v_or_b32 v{VA}, s14, v1")
    if rot is not None:
        for j in range(1, 16):
            a(f"v_xor_b32 v{VA+j}, {j << 10}, v{VA}")
    if outpf: a("v_mov_b32 v6, s3")
    a("s_mov_b32 s12, 0xffff0000")
    a("v_mov_b32 v4, 0x3b000000")
    a("v_mov_b32 v5, 0x358637bd")
    if l2pf:
        a("s_getpc_b64 s[16:17]")
        a("v_lshlrev_b32 v6, 6, v0")
        a("v_min_u32 v6, 2688, v6")
        a("global_load_dword v7, v6, s[16:17] offset:0")
    if prio is not None: a(f"s_setprio {prio}")
    if hop:
        a("s_lshr_b32 s13, s2, 8")
        for k in range(1, 2 if chain else 3):
            a(f"s_cmp_eq_u32 s13, {hopgen[k-1]}")
            a(f"s_cbranch_scc1 H{k}")
        a("Hback:")
        a("s_cmp_lg_u32 s2, s2")
    a("s_waitcnt lgkmcnt(0)")
    if trace: tr(a, 1)
    q = []
    def wait_for(tag):
        if tag not in q: return
        a(f"s_waitcnt vmcnt({len(q) - 1 - q.index(tag)})")
        del q[:q.index(tag) + 1]
    def gb():
        a(f"global_load_dwordx4 v[{G}:{G+3}], v1, s[6:7]"); q.append("g")
        a(f"global_load_dwordx4 v[{B}:{B+3}], v1, s[8:9]"); q.append("b")
        if outpf: a("global_load_dword v7, v6, s[10:11] nt"); q.append("o")
    for n, r in enumerate(order):
        if n == gbpos: gb()
        va = "v2" if r < 8 else "v3"
        off = -4096 + (r % 8) * 1024
        if rot is not None: va, off = f"v{VA+r}", 0
        a(f"global_load_dwordx4 v[{P+4*r}:{P+4*r+3}], {va}, s[4:5] offset:{off} {ldf}")
        q.append(r)
    if gbpos >= 16 and jit is None: gb()
    def unpack_gb():
        wait_for("b")
        for j in range(4):
            a(f"v_lshlrev_b32 v{SH+4+j}, 16, v{G+j}")
            a(f"v_and_b32 v{SH+j}, s12, v{G+j}")
        for j in range(4):
            a(f"v_lshlrev_b32 v{BH+4+j}, 16, v{B+j}")
            a(f"v_and_b32 v{BH+j}, s12, v{B+j}")
    for n, r in enumerate(order):
        if n == gbpos: unpack_gb()
        wait_for(r)
        if jit == n: gb()
        if trace and n == 0: tr(a, 2)
        if trace and n == 15: tr(a, 3)
        p = P + 4*r; l = L + 4*r
        def sq(reg, acc):
            if n == 0: a(f"v_pk_mul_f32 v[{acc}:{acc+1}], v[{reg}:{reg+1}], v[{reg}:{reg+1}]")
            else: a(f"v_pk_fma_f32 v[{acc}:{acc+1}], v[{reg}:{reg+1}], v[{reg}:{reg+1}], v[{acc}:{acc+1}]")
        for j in range(4):
            a(f"v_lshlrev_b32 v{l+j}, 16, v{p+j}")
            a(f"v_and_b32 v{p+j}, s12, v{p+j}")
        sq(p, ACC); sq(l, ACC+4); sq(p+2, ACC+2); sq(l+2, ACC+6)
    if gbpos >= 16 and jit is None: unpack_gb()
    for j in (0, 1, 4, 5, 2, 3, 6, 7):
        a(f"v_sqrt_f32 v{ACC+j}, v{ACC+j}")
    a(f"v_pk_add_f32 v[{T}:{T+1}], v[{ACC}:{ACC+1}], v[{ACC+4}:{ACC+5}]")
    a(f"v_pk_add_f32 v[{T+2}:{T+3}], v[{ACC+2}:{ACC+3}], v[{ACC+6}:{ACC+7}]")
    a(f"v_pk_add_f32 v[{T}:{T+1}], v[{T}:{T+1}], v[{T+2}:{T+3}]")
    a(f"v_add_f32 v{T}, v{T}, v{T+1}")
    if jit is not None:
        T0 = T
        unpack_gb()
    fill = [[f"v_pk_mul_f32 v[{SH+j}:{SH+j+1}], v[{SH+j}:{SH+j+1}], v[{ACC+j}:{ACC+j+1}]" for j in (0, 2)],
            [f"v_pk_mul_f32 v[{SH+j}:{SH+j+1}], v[{SH+j}:{SH+j+1}], v[{ACC+j}:{ACC+j+1}]" for j in (4, 6)],
            ["s_nop 1"], ["s_nop 1"], ["s_nop 1"], ["s_nop 1"]]
    steps = ["quad_perm:[1,0,3,2] row_mask:0xf bank_mask:0xf",
             "quad_perm:[2,3,0,1] row_mask:0xf bank_mask:0xf",
             "row_half_mirror row_mask:0xf bank_mask:0xf",
             "row_mirror row_mask:0xf bank_mask:0xf",
             "row_bcast:15 row_mask:0xa bank_mask:0xf",
             "row_bcast:31 row_mask:0xc bank_mask:0xf"]
    for f, s in zip(fill, steps):
        for x in f: a(x)
        a(f"v_add_f32_dpp v{T}, v{T}, v{T} {s}")
    a(f"v_fma_f32 v{T}, v{T}, v4, v5")
    a(f"v_rcp_f32 v{T}, v{T}")
    a("s_nop 0")
    a(f"v_readlane_b32 s14, v{T}, 63")
    a("s_nop 1")
    for j in (0, 4, 2, 6):
        a(f"v_pk_fma_f32 v[{SH+j}:{SH+j+1}], v[{SH+j}:{SH+j+1}], s[14:15], 1.0 op_sel_hi:[1,0,0]")
    if hold:
        a("L_hold:")
        a("s_memrealtime s[22:23]")
        a("s_waitcnt lgkmcnt(0)")
        a("s_sub_u32 s22, s22, s24")
        a(f"s_cmp_lt_u32 s22, {hold}")
        a("s_cbranch_scc1 L_hold")
    if trace: tr(a, 4)
    for r in storder:
        p = P + 4*r; l = L + 4*r
        for j in (0, 2):
            a(f"v_pk_fma_f32 v[{p+j}:{p+j+1}], v[{p+j}:{p+j+1}], v[{SH+j}:{SH+j+1}], v[{BH+j}:{BH+j+1}]")
            a(f"v_pk_fma_f32 v[{l+j}:{l+j+1}], v[{l+j}:{l+j+1}], v[{SH+4+j}:{SH+4+j+1}], v[{BH+4+j}:{BH+4+j+1}]")
        for j in range(4):
            a(f"v_cvt_pk_bf16_f32 v{p+j}, v{l+j}, v{p+j}")
        va = "v2" if r < 8 else "v3"
        off = -4096 + (r % 8) * 1024
        if rot is not None: va, off = f"v{VA+r}", 0
        a(f"global_store_dwordx4 {va}, v[{p}:{p+3}], s[10:11] offset:{off} {stf}")
    if trace: tr(a, 5); tr_tail(a, 7, T, 1, None)
    if amp: amp_tail(a, T)
    a("L_done:")
    a("s_endpgm")
    if amp: amp_outofline(a, T)
    if hop and chain:
        a.lines.append("    s_branch H2")
        insert_hops(a, 2)
        a.lines.pop()
        i = a.lines.index("H1:")
        a.lines[i+1] = "    s_cbranch_scc1 H2"
    elif hop: insert_hops(a, 2)
    return wrap(a.text(), nwg, 64, 0, 192 if jit is not None else T+8 if rot is None else VA+16, 96 if trace else 32)

IL = [x for i in range(8) for x in (i, i+8)]
IL4 = [x for i in range(4) for x in (i, i+8, i+4, i+12)]
IL2 = [x for i in range(0, 8, 2) for x in (i, i+1, i+8, i+9)]
XM = [(8,3,1),(8,3,2),(8,3,3),(8,3,4),(8,3,5),(8,1,1),(9,1,1),(9,1,2)]
V = {
    "d_nt": dict(),
    "d_nt_rot1": dict(rot=1),
    "d_nt_rot3": dict(rot=3),
    "d_nt_rot0": dict(rot=0),
    "d_nt_rot6": dict(rot=6),
    "d_nt_rot3m12": dict(rot=1, rotmask=12),
    "d_nt_rot3m4": dict(rot=1, rotmask=4),
    "d_sc_rot1": dict(rot=1, stf="sc0 sc1 nt"),
    "d_sc_rot3": dict(rot=3, stf="sc0 sc1 nt"),
    "d_pl": dict(stf=""),
    **{f"d_nt_j{j}": dict(jit=j) for j in (4, 8, 11, 13, 15)},
    **{f"d_sc_j{j}": dict(jit=j, stf="sc0 sc1 nt") for j in (8, 13)},
    **{f"d_nt_gb{j}": dict(gbpos=j) for j in (2, 3, 4, 6, 8, 11)},
    "d_nt_il": dict(order=IL),
    "d_nt_ilil": dict(order=IL, storder=IL),
    "d_nt_sil": dict(storder=IL),
    "d_nt_il4": dict(order=IL4, storder=IL4),
    "d_nt_srev": dict(storder=list(range(15, -1, -1))),
    "d_nt_il2": dict(order=IL2, storder=IL2),
    "d_nt_h23": dict(hopgen=(2, 3)),
    "d_nt_h3c": dict(hopgen=(3, 3), chain=True),
    "d_nt_l2": dict(hop=False, l2pf=True),
    **{f"dh{h}": dict(hold=h) for h in (100, 180, 200, 220, 240, 260)},
    "d_nt_m1": dict(bmap=("x", 3, 1)),
    "d_nt_m2": dict(bmap=("x", 3, 7)),
    "d_nt_m3": dict(bmap=("x", 8, 1)),
    "d_nt_m4": dict(bmap=("g",)),
    "d_nt_m5": dict(bmap=("p",)),
    "d_nt_m6": dict(bmap=("x", 7, 7)),
    "d_sc_m1": dict(bmap=("x", 3, 1), stf="sc0 sc1 nt"),
    **{f"d_x{sh}_{m}_{l}": dict(bmap=("x", sh, m, l)) for sh, m, l in XM},
    "d_y1": dict(bmap=("m", [(8,1,2),(9,1,1)])),
    "d_y2": dict(bmap=("m", [(8,3,1),(8,3,3)])),
    "d_y3": dict(bmap=("m", [(8,3,1),(3,1,0)])),
    "d_y4": dict(bmap=("m", [(8,3,1),(3,3,1)])),
    "d_y5": dict(bmap=("m", [(8,3,1),(7,1,2)])),
    "d_y6": dict(bmap=("m", [(8,3,1),(6,1,0)])),
    "d_y7": dict(bmap=("m", [(8,3,1),(9,1,0)])),
    "d_sc_x831": dict(bmap=("x", 8, 3, 1), stf="sc0 sc1 nt"),
    "d_lin": dict(bmap=("lin", [1 << (14+j) for j in range(10)]), rot="lin"),
    "d_lin_sc": dict(bmap=("lin", [1 << (14+j) for j in range(10)]), rot="lin", stf="sc0 sc1 nt"),
    "d_linC": dict(bmap=("lin", [x << 10 for x in (0x105c,0x228,0x60,0x229c,0x312,0xa02,0x414,0xa20,0x1022,0x2040)]), rot="lin"),
    "d_linB": dict(bmap=("lin", [x << 10 for x in (0x1014,0x28,0x40,0x2084,0x102,0x202,0x410,0xa00,0x1020,0x2040)]), rot="lin"),
    "d_nt_nohop": dict(hop=False),
    "d_nt_op": dict(outpf=True),
    "d_nt_gb16": dict(gbpos=16),
    "d_nt_gb0": dict(gbpos=0),
    "d_sc": dict(stf="sc0 sc1 nt"),
    "d_sc_nohop": dict(stf="sc0 sc1 nt", hop=False),
    "d_sc_op": dict(stf="sc0 sc1 nt", outpf=True),
    "d_sc1nt": dict(stf="sc1 nt"),
    "d_pl_nt": dict(ldf=""),
    "d_ldsc_nt": dict(ldf="sc0 sc1 nt"),
}
if __name__ == "__main__":
    out = "var/"
    for name, kw in V.items():
        open(out + name + ".s", "w").write(gen(**kw))
        open(out + name + "_tr.s", "w").write(gen(trace=True, **kw))
        open(out + name + "_amp.s", "w").write(gen(amp=True, **kw))
    print(" ".join(V))
```

```python
HEADER = """; Kernarg layout for this problem (48 bytes, ptrs only, base s[0:1]):
; @launch grid=({grid},1,1) block=({block},1,1) lds={lds}
.amdgcn_target "amdgcn-amd-amdhsa--gfx950"
.text
.p2align 12
.globl standalone__grn__sampling_kernel
.p2align 8
.type standalone__grn__sampling_kernel,@function
standalone__grn__sampling_kernel:
"""

FOOTER = """.section .rodata,"a"
.p2align 6
.amdhsa_kernel standalone__grn__sampling_kernel
  .amdhsa_next_free_vgpr {vgpr}
  .amdhsa_next_free_sgpr {sgpr}
  .amdhsa_accum_offset {accum}
  .amdhsa_group_segment_fixed_size 0
  .amdhsa_kernarg_size 48
  .amdhsa_user_sgpr_count 2
  .amdhsa_user_sgpr_kernarg_segment_ptr 1
  .amdhsa_system_sgpr_workgroup_id_x 1
  .amdhsa_float_denorm_mode_32 3
.end_amdhsa_kernel
"""

class Asm:
    def __init__(self):
        self.lines = []
    def __call__(self, s):
        for l in s.strip("\n").split("\n"):
            self.lines.append("    " + l.strip() if not l.strip().endswith(":") else l.strip())
    def text(self):
        return "\n".join(self.lines) + "\n"

def wrap(body, grid, block, lds, vgpr, sgpr=32):
    if "L_amp_pub" in body: grid += 1
    accum = (vgpr + 3) // 4 * 4
    return HEADER.format(grid=grid, block=block, lds=lds) + body + FOOTER.format(vgpr=vgpr, sgpr=sgpr, accum=accum)

def diag_tail(a, n):
    a(f"s_memrealtime s[{20+2*(n-2)}:{21+2*(n-2)}]")
    a("s_waitcnt vmcnt(0)")
    a(f"s_memrealtime s[{20+2*(n-1)}:{21+2*(n-1)}]")
    a("s_waitcnt lgkmcnt(0)")
    a("v_mbcnt_lo_u32_b32 v5, -1, 0")
    a("v_mbcnt_hi_u32_b32 v5, -1, v5")
    a("v_lshlrev_b32 v5, 2, v5")
    a("v_mov_b32 v4, 0")
    for i in range(n):
        a(f"s_not_b32 s17, s{20+2*i}")
        a(f"v_writelane_b32 v4, s17, {2*i}")
        a(f"v_writelane_b32 v4, s{20+2*i}, {2*i+1}")
    a(f"s_mov_b64 exec, {hex((1 << (2*n)) - 1)}")
    a("global_atomic_umax v5, v4, s[18:19]")

def amp_head(a, n=1024):
    a("s_memrealtime s[20:21]")
    a(f"s_cmpk_eq_u32 s2, {n}")
    a("s_cbranch_scc1 L_amp_pub")
def amp_kernarg(a):
    pass
def amp_publish(a, vt):
    pass
def amp_outofline(a, vt):
    a("L_amp_pub:")
    a("s_load_dwordx2 s[18:19], s[0:1], 32")
    a("s_waitcnt lgkmcnt(0)")
    a("s_or_b32 s22, s20, 1")
    a(f"v_mov_b32 v{vt}, 0")
    a(f"v_mov_b32 v{vt+1}, s22")
    a(f"global_store_dword v{vt}, v{vt+1}, s[18:19] sc0 sc1")
    a("s_endpgm")
def amp_tail(a, vt, k=11, atomic=False):
    a("s_waitcnt vmcnt(0)")
    a("s_memrealtime s[22:23]")
    a("s_load_dwordx2 s[18:19], s[0:1], 32")
    a(f"v_mov_b32 v{vt}, 0")
    a("s_waitcnt lgkmcnt(0)")
    a(f"global_load_dword v{vt+1}, v{vt}, s[18:19] sc0 sc1")
    a("s_waitcnt vmcnt(0) lgkmcnt(0)")
    a(f"v_readfirstlane_b32 s24, v{vt+1}")
    a("s_nop 3")
    a("s_cmp_eq_u32 s24, 0")
    a("s_cselect_b32 s24, s20, s24")
    a("s_sub_u32 s25, s22, s24")
    a("s_min_u32 s25, s25, 3000")
    a(f"s_mul_i32 s26, s25, {k}")
    a("L_amp_spin:")
    a("s_sleep 4")
    a("s_memrealtime s[22:23]")
    a("s_waitcnt lgkmcnt(0)")
    a("s_sub_u32 s22, s22, s24")
    a("s_cmp_lt_u32 s22, s26")
    a("s_cbranch_scc1 L_amp_spin")
    if atomic:
        a(f"v_mov_b32 v{vt+1}, s25")
        a("s_mov_b64 exec, 1")
        a(f"global_atomic_umax v{vt}, v{vt+1}, s[18:19] offset:4")

def tr_kernarg(a):
    a("s_load_dwordx2 s[36:37], s[0:1], 40")
def tr(a, i):
    a(f"s_memrealtime s[{40+2*i}:{41+2*i}]")
def tr_tail(a, n, vt, wpb, widreg):
    a("s_waitcnt vmcnt(0)")
    tr(a, n-1)
    a("s_getreg_b32 s38, hwreg(HW_REG_XCC_ID)")
    a("s_getreg_b32 s39, hwreg(HW_REG_HW_ID)")
    a("s_waitcnt lgkmcnt(0)")
    a(f"v_mov_b32 v{vt}, 0")
    for i in range(n):
        a(f"v_writelane_b32 v{vt}, s{40+2*i}, {i}")
    a(f"v_writelane_b32 v{vt}, s38, 30")
    a(f"v_writelane_b32 v{vt}, s39, 31")
    a(f"v_mbcnt_lo_u32_b32 v{vt+1}, -1, 0")
    a(f"v_mbcnt_hi_u32_b32 v{vt+1}, -1, v{vt+1}")
    a(f"v_lshlrev_b32 v{vt+1}, 2, v{vt+1}")
    a(f"s_mul_i32 s38, s2, {128*wpb}")
    a(f"v_add_u32 v{vt+1}, s38, v{vt+1}")
    if widreg is not None:
        a(f"v_lshl_add_u32 v{vt+1}, v{widreg}, 7, v{vt+1}")
    a("s_mov_b32 exec_hi, 0")
    a(f"global_store_dword v{vt+1}, v{vt}, s[36:37]")

import subprocess, re, os
def line_offsets(lines):
    src = ['.amdgcn_target "amdgcn-amd-amdhsa--gfx950"', ".text", "K0:"]
    for i, l in enumerate(lines):
        src.append(f"Q{i}:")
        src.append(l)
    src.append(f"Q{len(lines)}:")
    open("off.s", "w").write("\n".join(src) + "\n")
    r = subprocess.run(["clang", "-x", "assembler", "-target", "amdgcn-amd-amdhsa", "-mcpu=gfx950", "-c", "off.s", "-o", "off.o"], capture_output=True, text=True)
    assert r.returncode == 0, r.stderr
    out = subprocess.run(["llvm-readelf", "-s", "off.o"], capture_output=True, text=True).stdout
    off = {}
    for l in out.splitlines():
        p = l.split()
        if len(p) == 8 and re.fullmatch(r"Q\d+", p[7]): off[int(p[7][1:])] = int(p[1], 16)
    return [off[i] for i in range(len(lines) + 1)]

def insert_hops(a, nh, end_label="L_done:", entry_in_page=0x300, back="Hback"):
    start = 0
    placed = 0
    for k in range(1, nh + 1):
        stub = [f"H{j}:" for j in range(k, nh + 1)]
        offs = line_offsets(a.lines + stub)
        nxt = start + 1088
        page = 4096 - entry_in_page
        if start < page < nxt: nxt = page
        end = offs[a.lines.index(end_label)] + 4
        if nxt >= end: break
        i = next(i for i in range(len(a.lines)) if offs[i] >= nxt)
        while a.lines[i-1].strip().startswith("s_cmp"): i += 1
        a.lines[i:i] = [f"H{k}:", f"    s_cbranch_scc1 {back}"]
        start = nxt
        placed = k
    i = a.lines.index(back + ":")
    a.lines[i:i] = [f"H{j}:" for j in range(placed + 1, nh + 1)]
    return placed
```

```python
from common import *

def gen(ldf="nt", stf="nt", gbpos=9, hopgen=(2, 3),
        grp=((0x80, 12), (0x300, 7), (0x1, 22), (0x8, 20), (0x40, 8))):
    a = Asm()
    def c(s): a.lines.append("    ; " + s)
    P = 8
    L = 72
    ACC = 136
    SH = 144
    BH = 152
    T = 160
    VA = 168
    G, B = T, T + 4
    c("kernarg: s[4:5]=x s[6:7]=g s[8:9]=b s[10:11]=out")
    a("s_load_dwordx8 s[4:11], s[0:1], 0")
    a("s_cmp_ge_u32 s2, 1024")
    a("s_cbranch_scc1 L_done")
    a("v_lshlrev_b32 v1, 4, v0")
    c("batch = workgroup id through a fixed invertible xor map (bijection on 0..1023; speed only):")
    c("s3 = batch * 16384")
    a("s_lshl_b32 s3, s2, 14")
    for m, sh in grp:
        a(f"s_and_b32 s13, s2, {hex(m)}")
        a(f"s_lshl_b32 s13, s13, {sh}")
        a("s_xor_b32 s3, s3, s13")
    a(f"v_or_b32 v{VA}, s3, v1")
    for k in (1, 2, 3): a(f"v_or_b32 v{VA+k}, {hex(k << 12)}, v{VA}")
    a("s_mov_b32 s12, 0xffff0000")
    a("v_mov_b32 v4, 0x3b000000                 ; 1/512")
    a("v_mov_b32 v5, 0x358637bd                 ; 1e-6")
    c("instruction prefetch while the kernarg load is in flight: one fetch miss brings 17 lines (1088 B),")
    c("so one of the four waves of a CU touches H1 and another H2 (SCC=1) and both come straight back;")
    c("in the main flow SCC is 0 at H1/H2 and the branches fall through")
    a("s_lshr_b32 s13, s2, 8")
    for k in (1, 2):
        a(f"s_cmp_eq_u32 s13, {hopgen[k-1]}")
        a(f"s_cbranch_scc1 H{k}")
    a("Hback:")
    a("s_cmp_lg_u32 s2, s2")
    a("s_waitcnt lgkmcnt(0)")
    q = []
    def wait_for(tag):
        a(f"s_waitcnt vmcnt({len(q) - 1 - q.index(tag)})")
        del q[:q.index(tag) + 1]
    c("16 rows of x (1 KiB each), g and b in between")
    for r in range(16):
        if r == gbpos:
            a(f"global_load_dwordx4 v[{G}:{G+3}], v1, s[6:7]"); q.append("g")
            a(f"global_load_dwordx4 v[{B}:{B+3}], v1, s[8:9]"); q.append("b")
        a(f"global_load_dwordx4 v[{P+4*r}:{P+4*r+3}], v{VA+r//4}, s[4:5] offset:{(r % 4) * 1024} {ldf}")
        q.append(r)
    c("phase 1: bf16 -> f32 (kept for phase 2), per-channel sum of squares over the 16 rows")
    for r in range(16):
        if r == gbpos:
            wait_for("b")
            for j in range(4):
                a(f"v_lshlrev_b32 v{SH+4+j}, 16, v{G+j}")
                a(f"v_and_b32 v{SH+j}, s12, v{G+j}")
            for j in range(4):
                a(f"v_lshlrev_b32 v{BH+4+j}, 16, v{B+j}")
                a(f"v_and_b32 v{BH+j}, s12, v{B+j}")
        wait_for(r)
        p = P + 4*r; l = L + 4*r
        for j in range(4):
            a(f"v_lshlrev_b32 v{l+j}, 16, v{p+j}")
            a(f"v_and_b32 v{p+j}, s12, v{p+j}")
        for reg, acc in ((p, ACC), (l, ACC+4), (p+2, ACC+2), (l+2, ACC+6)):
            if r == 0: a(f"v_pk_mul_f32 v[{acc}:{acc+1}], v[{reg}:{reg+1}], v[{reg}:{reg+1}]")
            else: a(f"v_pk_fma_f32 v[{acc}:{acc+1}], v[{reg}:{reg+1}], v[{reg}:{reg+1}], v[{acc}:{acc+1}]")
    c("gx = sqrt(sum); sum of gx over the lane's 8 channels, then over the 64 lanes (lane 63 gets the total)")
    for j in (0, 1, 4, 5, 2, 3, 6, 7):
        a(f"v_sqrt_f32 v{ACC+j}, v{ACC+j}")
    a(f"v_pk_add_f32 v[{T}:{T+1}], v[{ACC}:{ACC+1}], v[{ACC+4}:{ACC+5}]")
    a(f"v_pk_add_f32 v[{T+2}:{T+3}], v[{ACC+2}:{ACC+3}], v[{ACC+6}:{ACC+7}]")
    a(f"v_pk_add_f32 v[{T}:{T+1}], v[{T}:{T+1}], v[{T+2}:{T+3}]")
    a(f"v_add_f32 v{T}, v{T}, v{T+1}")
    gm = lambda j: f"v_pk_mul_f32 v[{SH+j}:{SH+j+1}], v[{SH+j}:{SH+j+1}], v[{ACC+j}:{ACC+j+1}]"
    nop = "s_nop 1"
    fill = [[gm(0), gm(2)], [gm(4), gm(6)], [nop], [nop], [nop], [nop]]
    steps = ["quad_perm:[1,0,3,2] row_mask:0xf bank_mask:0xf",
             "quad_perm:[2,3,0,1] row_mask:0xf bank_mask:0xf",
             "row_half_mirror row_mask:0xf bank_mask:0xf",
             "row_mirror row_mask:0xf bank_mask:0xf",
             "row_bcast:15 row_mask:0xa bank_mask:0xf",
             "row_bcast:31 row_mask:0xc bank_mask:0xf"]
    for f, s in zip(fill, steps):
        for x in f: a(x)
        a(f"v_add_f32_dpp v{T}, v{T}, v{T} {s}")
    c("1 / (mean + 1e-6); scale = 1 + g * gx / (mean + 1e-6)")
    a(f"v_fma_f32 v{T}, v{T}, v4, v5")
    a(f"v_rcp_f32 v{T}, v{T}")
    a("s_nop 0")
    a(f"v_readlane_b32 s14, v{T}, 63")
    a("s_nop 1")
    for j in (0, 4, 2, 6):
        a(f"v_pk_fma_f32 v[{SH+j}:{SH+j+1}], v[{SH+j}:{SH+j+1}], s[14:15], 1.0 op_sel_hi:[1,0,0]")
    c("phase 2: out = x * scale + b  ( = g*(x*nx) + b + x ), round to bf16, store")
    for r in range(16):
        p = P + 4*r; l = L + 4*r
        for j in (0, 2):
            a(f"v_pk_fma_f32 v[{p+j}:{p+j+1}], v[{p+j}:{p+j+1}], v[{SH+j}:{SH+j+1}], v[{BH+j}:{BH+j+1}]")
            a(f"v_pk_fma_f32 v[{l+j}:{l+j+1}], v[{l+j}:{l+j+1}], v[{SH+4+j}:{SH+4+j+1}], v[{BH+4+j}:{BH+4+j+1}]")
        for j in range(4):
            a(f"v_cvt_pk_bf16_f32 v{p+j}, v{l+j}, v{p+j}")
        a(f"global_store_dwordx4 v{VA+r//4}, v[{p}:{p+3}], s[10:11] offset:{(r % 4) * 1024} {stf}")
    a("L_done:")
    a("s_endpgm")
    assert insert_hops(a, 2) == 2
    txt = wrap(a.text(), 1024, 64, 0, VA + 4, 16)
    note = (";\n; GRN: gx[c] = sqrt(sum_s x[s,c]^2), nx = gx / (mean_c gx + 1e-6), out = g*(x*nx) + b + x.\n"
            "; One wave per batch (16 x 512 bf16 = 16 KiB, read once, kept in registers); lane l owns channels 8l..8l+7.\n"
            "; The .p2align 12 keeps the whole kernel inside one 4 KiB page (instruction prefetch stops at page ends).\n")
    return txt.replace('.amdgcn_target', note + '.amdgcn_target', 1)

if __name__ == "__main__":
    t = gen()
    open("final.s", "w").write(t)
    open("standalone__grn__sampling.s", "w").write(t)
    grp = ((0x80, 12), (0x300, 7), (0x1, 22), (0x8, 20), (0x40, 8))
    s = set()
    for i in range(1024):
        v = i << 14
        for m, sh in grp: v ^= (i & m) << sh
        assert v % 16384 == 0 and v < 1 << 24
        s.add(v)
    assert len(s) == 1024
```

```python
HEADER = """; Kernarg layout for this problem (48 bytes, ptrs only, base s[0:1]):
; @launch grid=({grid},1,1) block=({block},1,1) lds={lds}
.amdgcn_target "amdgcn-amd-amdhsa--gfx950"
.text
.p2align 12
.globl standalone__grn__sampling_kernel
.p2align 8
.type standalone__grn__sampling_kernel,@function
standalone__grn__sampling_kernel:
"""

FOOTER = """.section .rodata,"a"
.p2align 6
.amdhsa_kernel standalone__grn__sampling_kernel
  .amdhsa_next_free_vgpr {vgpr}
  .amdhsa_next_free_sgpr {sgpr}
  .amdhsa_accum_offset {accum}
  .amdhsa_group_segment_fixed_size 0
  .amdhsa_kernarg_size 48
  .amdhsa_user_sgpr_count 2
  .amdhsa_user_sgpr_kernarg_segment_ptr 1
  .amdhsa_system_sgpr_workgroup_id_x 1
  .amdhsa_float_denorm_mode_32 3
.end_amdhsa_kernel
"""

class Asm:
    def __init__(self):
        self.lines = []
    def __call__(self, s):
        for l in s.strip("\n").split("\n"):
            self.lines.append("    " + l.strip() if not l.strip().endswith(":") else l.strip())
    def text(self):
        return "\n".join(self.lines) + "\n"

def wrap(body, grid, block, lds, vgpr, sgpr=32):
    if "L_amp_pub" in body: grid += 1
    accum = (vgpr + 3) // 4 * 4
    return HEADER.format(grid=grid, block=block, lds=lds) + body + FOOTER.format(vgpr=vgpr, sgpr=sgpr, accum=accum)

def diag_tail(a, n):
    a(f"s_memrealtime s[{20+2*(n-2)}:{21+2*(n-2)}]")
    a("s_waitcnt vmcnt(0)")
    a(f"s_memrealtime s[{20+2*(n-1)}:{21+2*(n-1)}]")
    a("s_waitcnt lgkmcnt(0)")
    a("v_mbcnt_lo_u32_b32 v5, -1, 0")
    a("v_mbcnt_hi_u32_b32 v5, -1, v5")
    a("v_lshlrev_b32 v5, 2, v5")
    a("v_mov_b32 v4, 0")
    for i in range(n):
        a(f"s_not_b32 s17, s{20+2*i}")
        a(f"v_writelane_b32 v4, s17, {2*i}")
        a(f"v_writelane_b32 v4, s{20+2*i}, {2*i+1}")
    a(f"s_mov_b64 exec, {hex((1 << (2*n)) - 1)}")
    a("global_atomic_umax v5, v4, s[18:19]")

def amp_head(a, n=1024):
    a("s_memrealtime s[20:21]")
    a(f"s_cmpk_eq_u32 s2, {n}")
    a("s_cbranch_scc1 L_amp_pub")
def amp_kernarg(a):
    pass
def amp_publish(a, vt):
    pass
def amp_outofline(a, vt):
    a("L_amp_pub:")
    a("s_load_dwordx2 s[18:19], s[0:1], 32")
    a("s_waitcnt lgkmcnt(0)")
    a("s_or_b32 s22, s20, 1")
    a(f"v_mov_b32 v{vt}, 0")
    a(f"v_mov_b32 v{vt+1}, s22")
    a(f"global_store_dword v{vt}, v{vt+1}, s[18:19] sc0 sc1")
    a("s_endpgm")
def amp_tail(a, vt, k=11, atomic=False):
    a("s_waitcnt vmcnt(0)")
    a("s_memrealtime s[22:23]")
    a("s_load_dwordx2 s[18:19], s[0:1], 32")
    a(f"v_mov_b32 v{vt}, 0")
    a("s_waitcnt lgkmcnt(0)")
    a(f"global_load_dword v{vt+1}, v{vt}, s[18:19] sc0 sc1")
    a("s_waitcnt vmcnt(0) lgkmcnt(0)")
    a(f"v_readfirstlane_b32 s24, v{vt+1}")
    a("s_nop 3")
    a("s_cmp_eq_u32 s24, 0")
    a("s_cselect_b32 s24, s20, s24")
    a("s_sub_u32 s25, s22, s24")
    a("s_min_u32 s25, s25, 3000")
    a(f"s_mul_i32 s26, s25, {k}")
    a("L_amp_spin:")
    a("s_sleep 4")
    a("s_memrealtime s[22:23]")
    a("s_waitcnt lgkmcnt(0)")
    a("s_sub_u32 s22, s22, s24")
    a("s_cmp_lt_u32 s22, s26")
    a("s_cbranch_scc1 L_amp_spin")
    if atomic:
        a(f"v_mov_b32 v{vt+1}, s25")
        a("s_mov_b64 exec, 1")
        a(f"global_atomic_umax v{vt}, v{vt+1}, s[18:19] offset:4")

def tr_kernarg(a):
    a("s_load_dwordx2 s[36:37], s[0:1], 40")
def tr(a, i):
    a(f"s_memrealtime s[{40+2*i}:{41+2*i}]")
def tr_tail(a, n, vt, wpb, widreg):
    a("s_waitcnt vmcnt(0)")
    tr(a, n-1)
    a("s_getreg_b32 s38, hwreg(HW_REG_XCC_ID)")
    a("s_getreg_b32 s39, hwreg(HW_REG_HW_ID)")
    a("s_waitcnt lgkmcnt(0)")
    a(f"v_mov_b32 v{vt}, 0")
    for i in range(n):
        a(f"v_writelane_b32 v{vt}, s{40+2*i}, {i}")
    a(f"v_writelane_b32 v{vt}, s38, 30")
    a(f"v_writelane_b32 v{vt}, s39, 31")
    a(f"v_mbcnt_lo_u32_b32 v{vt+1}, -1, 0")
    a(f"v_mbcnt_hi_u32_b32 v{vt+1}, -1, v{vt+1}")
    a(f"v_lshlrev_b32 v{vt+1}, 2, v{vt+1}")
    a(f"s_mul_i32 s38, s2, {128*wpb}")
    a(f"v_add_u32 v{vt+1}, s38, v{vt+1}")
    if widreg is not None:
        a(f"v_lshl_add_u32 v{vt+1}, v{widreg}, 7, v{vt+1}")
    a("s_mov_b32 exec_hi, 0")
    a(f"global_store_dword v{vt+1}, v{vt}, s[36:37]")

import subprocess, re, os
def line_offsets(lines):
    src = ['.amdgcn_target "amdgcn-amd-amdhsa--gfx950"', ".text", "K0:"]
    for i, l in enumerate(lines):
        src.append(f"Q{i}:")
        src.append(l)
    src.append(f"Q{len(lines)}:")
    open("off.s", "w").write("\n".join(src) + "\n")
    r = subprocess.run(["clang", "-x", "assembler", "-target", "amdgcn-amd-amdhsa", "-mcpu=gfx950", "-c", "off.s", "-o", "off.o"], capture_output=True, text=True)
    assert r.returncode == 0, r.stderr
    out = subprocess.run(["llvm-readelf", "-s", "off.o"], capture_output=True, text=True).stdout
    off = {}
    for l in out.splitlines():
        p = l.split()
        if len(p) == 8 and re.fullmatch(r"Q\d+", p[7]): off[int(p[7][1:])] = int(p[1], 16)
    return [off[i] for i in range(len(lines) + 1)]

def insert_hops(a, nh, end_label="L_done:", entry_in_page=0x300, back="Hback"):
    start = 0
    placed = 0
    for k in range(1, nh + 1):
        stub = [f"H{j}:" for j in range(k, nh + 1)]
        offs = line_offsets(a.lines + stub)
        nxt = start + 1088
        page = 4096 - entry_in_page
        if start < page < nxt: nxt = page
        end = offs[a.lines.index(end_label)] + 4
        if nxt >= end: break
        i = next(i for i in range(len(a.lines)) if offs[i] >= nxt)
        while a.lines[i-1].strip().startswith("s_cmp"): i += 1
        a.lines[i:i] = [f"H{k}:", f"    s_cbranch_scc1 {back}"]
        start = nxt
        placed = k
    i = a.lines.index(back + ":")
    a.lines[i:i] = [f"H{j}:" for j in range(placed + 1, nh + 1)]
    return placed

PROMOTE = ("v_lshlrev_b32", "v_and_b32", "v_add_f32", "v_sqrt_f32", "v_rcp_f32", "v_mov_b32", "v_or_b32", "v_fmac_f32")
def _is_instr(l):
    s = l.strip()
    return bool(s) and not s.startswith(";") and not s.endswith(":") and not s.startswith(".")
def sizes_of(lines, extra=()):
    offs = line_offsets(list(lines) + list(extra))
    return [offs[i+1] - offs[i] for i in range(len(lines))]
def align8(lines, sizes, start):
    out, osz = list(lines[:start]), list(sizes[:start])
    off = sum(osz)
    run = []
    for l, sz in zip(lines[start:], sizes[start:]):
        if sz == 8 and off % 8 == 4:
            done = False
            for i in reversed(run):
                o = sum(osz[:i])
                s = out[i].strip()
                if o % 8 == 0 and s.split()[0] in PROMOTE and not re.search(r"0x[0-9a-f]{3,}", s):
                    out[i] = out[i].replace(s.split()[0], s.split()[0] + "_e64", 1); osz[i] = 8; done = True; break
                if s.startswith("s_nop 1"):
                    out[i] = out[i].replace("s_nop 1", "s_nop 0", 1); out.insert(i + 1, "    s_nop 0"); osz.insert(i + 1, 4); done = True; break
            if not done:
                out.append("    s_nop 0                                  ; keeps the 8-byte instructions below 8-byte aligned"); osz.append(4)
            off += 4
        out.append(l); osz.append(sz); off += sz
        if sz == 8: run = []
        elif sz == 4: run.append(len(out) - 1)
    return out, osz
def hops_aligned(a, nh, back="Hback"):
    base = list(a.lines)
    sizes = sizes_of(base, [f"H{j}:" for j in range(1, nh + 1)])
    start = base.index(back + ":")
    pos = []
    for k in range(1, nh + 1):
        target = 1088 * k
        best = None
        for i in range((pos[-1] if pos else start) + 1, len(base)):
            l2, s2 = list(base), list(sizes)
            for n, p in reversed(list(enumerate(pos + [i], 1))):
                l2[p:p] = [f"H{n}:", f"    s_cbranch_scc1 {back}"]; s2[p:p] = [0, 4]
            o, os_ = align8(l2, s2, start)
            off = sum(os_[:o.index(f"H{k}:")])
            if off >= target + 64: break
            if off >= target:
                cost = sum("keeps the 8-byte" in l for l in o)
                if best is None or cost < best[0]: best = (cost, i, o, os_)
        _, i, o, os_ = best
        pos.append(i)
    a.lines = o
    return sum(os_)
```

```python
from common import *

def gen(ldf="nt", stf="nt", gbpos=9, hopgen=(2, 3), align=True, amp=False,
        grp=((0x80, 12), (0x300, 7), (0x1, 22), (0x8, 20), (0x40, 8))):
    a = Asm()
    def c(s): a.lines.append("    ; " + s)
    P = 8
    L = 72
    ACC = 136
    SH = 144
    BH = 152
    T = 160
    VA = 168
    G, B = T, T + 4
    c("kernarg: s[4:5]=x s[6:7]=g s[8:9]=b s[10:11]=out")
    if amp: amp_head(a)
    a("s_load_dwordx8 s[4:11], s[0:1], 0")
    a("s_cmp_ge_u32 s2, 1024")
    a("s_cbranch_scc1 L_done")
    a("v_lshlrev_b32 v1, 4, v0")
    c("batch = workgroup id through a fixed invertible xor map (bijection on 0..1023; speed only):")
    c("s3 = batch * 16384")
    a("s_lshl_b32 s3, s2, 14")
    for m, sh in grp:
        a(f"s_and_b32 s13, s2, {hex(m)}")
        a(f"s_lshl_b32 s13, s13, {sh}")
        a("s_xor_b32 s3, s3, s13")
    a(f"v_or_b32 v{VA}, s3, v1")
    for k in (1, 2, 3): a(f"v_or_b32 v{VA+k}, {hex(k << 12)}, v{VA}")
    a("s_mov_b32 s12, 0xffff0000")
    a("v_mov_b32 v4, 0x3b000000                 ; 1/512")
    a("v_mov_b32 v5, 0x358637bd                 ; 1e-6")
    c("instruction prefetch while the kernarg load is in flight: one fetch miss brings 17 lines (1088 B),")
    c("so one of the four waves of a CU touches H1 and another H2 (SCC=1) and both come straight back;")
    c("in the main flow SCC is 0 at H1/H2 and the branches fall through")
    a("s_lshr_b32 s13, s2, 8")
    for k in (1, 2):
        a(f"s_cmp_eq_u32 s13, {hopgen[k-1]}")
        a(f"s_cbranch_scc1 H{k}")
    a("Hback:")
    a("s_cmp_lg_u32 s2, s2")
    a("s_waitcnt lgkmcnt(0)")
    q = []
    def wait_for(tag):
        a(f"s_waitcnt vmcnt({len(q) - 1 - q.index(tag)})")
        del q[:q.index(tag) + 1]
    c("16 rows of x (1 KiB each), g and b in between")
    for r in range(16):
        if r == gbpos:
            a(f"global_load_dwordx4 v[{G}:{G+3}], v1, s[6:7]"); q.append("g")
            a(f"global_load_dwordx4 v[{B}:{B+3}], v1, s[8:9]"); q.append("b")
        a(f"global_load_dwordx4 v[{P+4*r}:{P+4*r+3}], v{VA+r//4}, s[4:5] offset:{(r % 4) * 1024} {ldf}")
        q.append(r)
    c("phase 1: bf16 -> f32 (kept for phase 2), per-channel sum of squares over the 16 rows")
    for r in range(16):
        if r == gbpos:
            wait_for("b")
            for j in range(4):
                a(f"v_lshlrev_b32 v{SH+4+j}, 16, v{G+j}")
                a(f"v_and_b32 v{SH+j}, s12, v{G+j}")
            for j in range(4):
                a(f"v_lshlrev_b32 v{BH+4+j}, 16, v{B+j}")
                a(f"v_and_b32 v{BH+j}, s12, v{B+j}")
        wait_for(r)
        p = P + 4*r; l = L + 4*r
        for j in range(4):
            a(f"v_lshlrev_b32 v{l+j}, 16, v{p+j}")
            a(f"v_and_b32 v{p+j}, s12, v{p+j}")
        for reg, acc in ((p, ACC), (l, ACC+4), (p+2, ACC+2), (l+2, ACC+6)):
            if r == 0: a(f"v_pk_mul_f32 v[{acc}:{acc+1}], v[{reg}:{reg+1}], v[{reg}:{reg+1}]")
            else: a(f"v_pk_fma_f32 v[{acc}:{acc+1}], v[{reg}:{reg+1}], v[{reg}:{reg+1}], v[{acc}:{acc+1}]")
    c("gx = sqrt(sum); sum of gx over the lane's 8 channels, then over the 64 lanes (lane 63 gets the total)")
    for j in (0, 1, 4, 5, 2, 3, 6, 7):
        a(f"v_sqrt_f32 v{ACC+j}, v{ACC+j}")
    a(f"v_pk_add_f32 v[{T}:{T+1}], v[{ACC}:{ACC+1}], v[{ACC+4}:{ACC+5}]")
    a(f"v_pk_add_f32 v[{T+2}:{T+3}], v[{ACC+2}:{ACC+3}], v[{ACC+6}:{ACC+7}]")
    a(f"v_pk_add_f32 v[{T}:{T+1}], v[{T}:{T+1}], v[{T+2}:{T+3}]")
    a(f"v_add_f32 v{T}, v{T}, v{T+1}")
    gm = lambda j: f"v_pk_mul_f32 v[{SH+j}:{SH+j+1}], v[{SH+j}:{SH+j+1}], v[{ACC+j}:{ACC+j+1}]"
    nop = "s_nop 1"
    fill = [[gm(0), gm(2)], [gm(4), gm(6)], [nop], [nop], [nop], [nop]]
    steps = ["quad_perm:[1,0,3,2] row_mask:0xf bank_mask:0xf",
             "quad_perm:[2,3,0,1] row_mask:0xf bank_mask:0xf",
             "row_half_mirror row_mask:0xf bank_mask:0xf",
             "row_mirror row_mask:0xf bank_mask:0xf",
             "row_bcast:15 row_mask:0xa bank_mask:0xf",
             "row_bcast:31 row_mask:0xc bank_mask:0xf"]
    for f, s in zip(fill, steps):
        for x in f: a(x)
        a(f"v_add_f32_dpp v{T}, v{T}, v{T} {s}")
    c("1 / (mean + 1e-6); scale = 1 + g * gx / (mean + 1e-6)")
    a(f"v_fma_f32 v{T}, v{T}, v4, v5")
    a(f"v_rcp_f32 v{T}, v{T}")
    a("s_nop 0")
    a(f"v_readlane_b32 s14, v{T}, 63")
    a("s_nop 1")
    for j in (0, 4, 2, 6):
        a(f"v_pk_fma_f32 v[{SH+j}:{SH+j+1}], v[{SH+j}:{SH+j+1}], s[14:15], 1.0 op_sel_hi:[1,0,0]")
    c("phase 2: out = x * scale + b  ( = g*(x*nx) + b + x ), round to bf16, store")
    for r in range(16):
        p = P + 4*r; l = L + 4*r
        for j in (0, 2):
            a(f"v_pk_fma_f32 v[{p+j}:{p+j+1}], v[{p+j}:{p+j+1}], v[{SH+j}:{SH+j+1}], v[{BH+j}:{BH+j+1}]")
            a(f"v_pk_fma_f32 v[{l+j}:{l+j+1}], v[{l+j}:{l+j+1}], v[{SH+4+j}:{SH+4+j+1}], v[{BH+4+j}:{BH+4+j+1}]")
        for j in range(4):
            a(f"v_cvt_pk_bf16_f32 v{p+j}, v{l+j}, v{p+j}")
        a(f"global_store_dwordx4 v{VA+r//4}, v[{p}:{p+3}], s[10:11] offset:{(r % 4) * 1024} {stf}")
    if amp: amp_tail(a, T)
    a("L_done:")
    a("s_endpgm")
    if amp: amp_outofline(a, T)
    if align:
        total = hops_aligned(a, 2)
        assert amp or total <= 3 * 1088
    else:
        assert insert_hops(a, 2) == 2
    txt = wrap(a.text(), 1024, 64, 0, VA + 4, 32 if amp else 16)
    note = (";\n; GRN: gx[c] = sqrt(sum_s x[s,c]^2), nx = gx / (mean_c gx + 1e-6), out = g*(x*nx) + b + x.\n"
            "; One wave per batch (16 x 512 bf16 = 16 KiB, read once, kept in registers); lane l owns channels 8l..8l+7.\n"
            "; The .p2align 12 keeps the whole kernel inside one 4 KiB page (instruction prefetch stops at page ends).\n")
    return txt.replace('.amdgcn_target', note + '.amdgcn_target', 1)

if __name__ == "__main__":
    t = gen()
    open("final.s", "w").write(t)
    open("standalone__grn__sampling.s", "w").write(t)
    open("final_na.s", "w").write(gen(align=False))
    open("final_amp.s", "w").write(gen(amp=True))
    open("final_na_amp.s", "w").write(gen(align=False, amp=True))
    grp = ((0x80, 12), (0x300, 7), (0x1, 22), (0x8, 20), (0x40, 8))
    s = set()
    for i in range(1024):
        v = i << 14
        for m, sh in grp: v ^= (i & m) << sh
        assert v % 16384 == 0 and v < 1 << 24
        s.add(v)
    assert len(s) == 1024
```

```python
from common import *

def gen(ldf="nt", stf="nt", gbpos=9, hopgen=(2, 3), align=True, amp=False, prio=None, outpf=None,
        grp=((0x80, 12), (0x300, 7), (0x1, 22), (0x8, 20), (0x40, 8))):
    a = Asm()
    def c(s): a.lines.append("    ; " + s)
    P = 8
    L = 72
    ACC = 136
    SH = 144
    BH = 152
    T = 160
    VA = 168
    G, B = T, T + 4
    c("kernarg: s[4:5]=x s[6:7]=g s[8:9]=b s[10:11]=out")
    if amp: amp_head(a)
    a("s_load_dwordx8 s[4:11], s[0:1], 0")
    a("s_cmp_ge_u32 s2, 1024")
    a("s_cbranch_scc1 L_done")
    a("v_lshlrev_b32 v1, 4, v0")
    c("batch = workgroup id through a fixed invertible xor map (bijection on 0..1023; speed only):")
    c("s3 = batch * 16384")
    a("s_lshl_b32 s3, s2, 14")
    for m, sh in grp:
        a(f"s_and_b32 s13, s2, {hex(m)}")
        a(f"s_lshl_b32 s13, s13, {sh}")
        a("s_xor_b32 s3, s3, s13")
    a(f"v_or_b32 v{VA}, s3, v1")
    for k in (1, 2, 3): a(f"v_or_b32 v{VA+k}, {hex(k << 12)}, v{VA}")
    if outpf is not None: a("v_mov_b32 v6, s3")
    a("s_mov_b32 s12, 0xffff0000")
    a("v_mov_b32 v4, 0x3b000000                 ; 1/512")
    a("v_mov_b32 v5, 0x358637bd                 ; 1e-6")
    c("instruction prefetch while the kernarg load is in flight: one fetch miss brings 17 lines (1088 B),")
    c("so one of the four waves of a CU touches H1 and another H2 (SCC=1) and both come straight back;")
    c("in the main flow SCC is 0 at H1/H2 and the branches fall through")
    a("s_lshr_b32 s13, s2, 8")
    if prio:
        for g, p in enumerate(prio):
            if p:
                a(f"s_cmp_lg_u32 s13, {g}")
                a(f"s_cbranch_scc1 L_pr{g}")
                a(f"s_setprio {p}")
                a(f"L_pr{g}:")
    for k in (1, 2):
        a(f"s_cmp_eq_u32 s13, {hopgen[k-1]}")
        a(f"s_cbranch_scc1 H{k}")
    a("Hback:")
    a("s_cmp_lg_u32 s2, s2")
    a("s_waitcnt lgkmcnt(0)")
    q = []
    def wait_for(tag):
        a(f"s_waitcnt vmcnt({len(q) - 1 - q.index(tag)})")
        del q[:q.index(tag) + 1]
    c("16 rows of x (1 KiB each), g and b in between")
    for r in range(16):
        if r == gbpos:
            a(f"global_load_dwordx4 v[{G}:{G+3}], v1, s[6:7]"); q.append("g")
            a(f"global_load_dwordx4 v[{B}:{B+3}], v1, s[8:9]"); q.append("b")
        if r == outpf:
            a("global_load_dword v7, v6, s[10:11] nt"); q.append("o")
        a(f"global_load_dwordx4 v[{P+4*r}:{P+4*r+3}], v{VA+r//4}, s[4:5] offset:{(r % 4) * 1024} {ldf}")
        q.append(r)
    c("phase 1: bf16 -> f32 (kept for phase 2), per-channel sum of squares over the 16 rows")
    for r in range(16):
        if r == gbpos:
            wait_for("b")
            for j in range(4):
                a(f"v_lshlrev_b32 v{SH+4+j}, 16, v{G+j}")
                a(f"v_and_b32 v{SH+j}, s12, v{G+j}")
            for j in range(4):
                a(f"v_lshlrev_b32 v{BH+4+j}, 16, v{B+j}")
                a(f"v_and_b32 v{BH+j}, s12, v{B+j}")
        wait_for(r)
        p = P + 4*r; l = L + 4*r
        for j in range(4):
            a(f"v_lshlrev_b32 v{l+j}, 16, v{p+j}")
            a(f"v_and_b32 v{p+j}, s12, v{p+j}")
        for reg, acc in ((p, ACC), (l, ACC+4), (p+2, ACC+2), (l+2, ACC+6)):
            if r == 0: a(f"v_pk_mul_f32 v[{acc}:{acc+1}], v[{reg}:{reg+1}], v[{reg}:{reg+1}]")
            else: a(f"v_pk_fma_f32 v[{acc}:{acc+1}], v[{reg}:{reg+1}], v[{reg}:{reg+1}], v[{acc}:{acc+1}]")
    c("gx = sqrt(sum); sum of gx over the lane's 8 channels, then over the 64 lanes (lane 63 gets the total)")
    for j in (0, 1, 4, 5, 2, 3, 6, 7):
        a(f"v_sqrt_f32 v{ACC+j}, v{ACC+j}")
    a(f"v_pk_add_f32 v[{T}:{T+1}], v[{ACC}:{ACC+1}], v[{ACC+4}:{ACC+5}]")
    a(f"v_pk_add_f32 v[{T+2}:{T+3}], v[{ACC+2}:{ACC+3}], v[{ACC+6}:{ACC+7}]")
    a(f"v_pk_add_f32 v[{T}:{T+1}], v[{T}:{T+1}], v[{T+2}:{T+3}]")
    a(f"v_add_f32 v{T}, v{T}, v{T+1}")
    gm = lambda j: f"v_pk_mul_f32 v[{SH+j}:{SH+j+1}], v[{SH+j}:{SH+j+1}], v[{ACC+j}:{ACC+j+1}]"
    nop = "s_nop 1"
    fill = [[gm(0), gm(2)], [gm(4), gm(6)], [nop], [nop], [nop], [nop]]
    steps = ["quad_perm:[1,0,3,2] row_mask:0xf bank_mask:0xf",
             "quad_perm:[2,3,0,1] row_mask:0xf bank_mask:0xf",
             "row_half_mirror row_mask:0xf bank_mask:0xf",
             "row_mirror row_mask:0xf bank_mask:0xf",
             "row_bcast:15 row_mask:0xa bank_mask:0xf",
             "row_bcast:31 row_mask:0xc bank_mask:0xf"]
    for f, s in zip(fill, steps):
        for x in f: a(x)
        a(f"v_add_f32_dpp v{T}, v{T}, v{T} {s}")
    c("1 / (mean + 1e-6); scale = 1 + g * gx / (mean + 1e-6)")
    a(f"v_fma_f32 v{T}, v{T}, v4, v5")
    a(f"v_rcp_f32 v{T}, v{T}")
    a("s_nop 0")
    a(f"v_readlane_b32 s14, v{T}, 63")
    a("s_nop 1")
    for j in (0, 4, 2, 6):
        a(f"v_pk_fma_f32 v[{SH+j}:{SH+j+1}], v[{SH+j}:{SH+j+1}], s[14:15], 1.0 op_sel_hi:[1,0,0]")
    c("phase 2: out = x * scale + b  ( = g*(x*nx) + b + x ), round to bf16, store")
    for r in range(16):
        p = P + 4*r; l = L + 4*r
        for j in (0, 2):
            a(f"v_pk_fma_f32 v[{p+j}:{p+j+1}], v[{p+j}:{p+j+1}], v[{SH+j}:{SH+j+1}], v[{BH+j}:{BH+j+1}]")
            a(f"v_pk_fma_f32 v[{l+j}:{l+j+1}], v[{l+j}:{l+j+1}], v[{SH+4+j}:{SH+4+j+1}], v[{BH+4+j}:{BH+4+j+1}]")
        for j in range(4):
            a(f"v_cvt_pk_bf16_f32 v{p+j}, v{l+j}, v{p+j}")
        a(f"global_store_dwordx4 v{VA+r//4}, v[{p}:{p+3}], s[10:11] offset:{(r % 4) * 1024} {stf}")
    if amp: amp_tail(a, T)
    a("L_done:")
    a("s_endpgm")
    if amp: amp_outofline(a, T)
    if align:
        total = hops_aligned(a, 2)
        assert amp or total <= 3 * 1088
    else:
        assert insert_hops(a, 2) == 2
    txt = wrap(a.text(), 1024, 64, 0, VA + 4, 32 if amp else 16)
    note = (";\n; GRN: gx[c] = sqrt(sum_s x[s,c]^2), nx = gx / (mean_c gx + 1e-6), out = g*(x*nx) + b + x.\n"
            "; One wave per batch (16 x 512 bf16 = 16 KiB, read once, kept in registers); lane l owns channels 8l..8l+7.\n"
            "; x is streamed (nt), out is written once with nt stores. 8-byte instructions are kept 8-byte aligned\n"
            "; (the _e64 forms and split s_nop pairs are there for that).\n"
            "; The .p2align 12 keeps the whole kernel inside one 4 KiB page (instruction prefetch stops at page ends).\n")
    return txt.replace('.amdgcn_target', note + '.amdgcn_target', 1)

if __name__ == "__main__":
    t = gen()
    open("final.s", "w").write(t)
    open("standalone__grn__sampling.s", "w").write(t)
    open("final_na.s", "w").write(gen(align=False))
    open("final_amp.s", "w").write(gen(amp=True))
    open("final_na_amp.s", "w").write(gen(align=False, amp=True))
    for n, p in (("p3210", (3,2,1,0)), ("p0123", (0,1,2,3)), ("p1100", (1,1,0,0)), ("p0011", (0,0,1,1)), ("p1000", (1,0,0,0))):
        open(f"final_{n}.s", "w").write(gen(prio=p))
        open(f"final_{n}_h01.s", "w").write(gen(prio=p, hopgen=(0,1)))
    open(f"final_op.s", "w").write(gen(outpf=3))
    open(f"final_op_amp.s", "w").write(gen(outpf=3, amp=True))
    grp = ((0x80, 12), (0x300, 7), (0x1, 22), (0x8, 20), (0x40, 8))
    s = set()
    for i in range(1024):
        v = i << 14
        for m, sh in grp: v ^= (i & m) << sh
        assert v % 16384 == 0 and v < 1 << 24
        s.add(v)
    assert len(s) == 1024
```
